```python
import torch

def _softmax(x, axis=-1):
    return torch.softmax(x, dim=axis)
def _gelu(x):
    return torch.nn.functional.gelu(x, approximate="tanh")
def _silu(x):
    return torch.nn.functional.silu(x)
def _sigmoid(x):
    return torch.sigmoid(x)
def _layernorm(x, axis=-1, eps=1e-5):
    m = x.mean(dim=axis, keepdim=True)
    v = x.var(dim=axis, keepdim=True, unbiased=False)
    return (x - m) / torch.sqrt(v + eps)
def _scatter_add(tgt, idx, src, axis=0):
    return tgt.clone().index_add_(axis, idx, src)
def _segment_sum(src, seg, n):
    out = torch.zeros((n,) + src.shape[1:], dtype=src.dtype)
    return out.index_add_(0, seg, src)
def _pad(x, pw):
    flat = tuple(v for pair in reversed(pw) for v in pair)
    return torch.nn.functional.pad(x, flat)

kernel_name = 'standalone__swiglu_ffn__sampling'

def setup_inputs():

    _w = (lambda a: (lambda t: t.to(torch.bfloat16) if t.is_floating_point() else t)(torch.as_tensor(a)))
    B, S, D, F = 32, 32, 1024, 3584
    return {
        "x": _w((lambda *s: torch.randn(*s, dtype=torch.bfloat16) * 0.05)(B, S, D)),
        "w_gate": _w((lambda *s: torch.randn(*s, dtype=torch.bfloat16) * 0.05)(D, F)),
        "w_up": _w((lambda *s: torch.randn(*s, dtype=torch.bfloat16) * 0.05)(D, F)),
        "w_down": _w((lambda *s: torch.randn(*s, dtype=torch.bfloat16) * 0.05)(F, D)),
    }

def reference(x, w_gate, w_up, w_down):
    g = _silu(x @ w_gate)
    u = x @ w_up
    return (g * u) @ w_down
```

```python
import sys

HDR = """; Kernarg layout for this problem (56 bytes, ptrs only, base s[0:1]):
"""


class A:
    def __init__(self):
        self.l = []

    def __call__(self, s):
        self.l.append("    " + s)

    def lab(self, s):
        self.l.append(s + ":")

    def c(self, s):
        self.l.append("    ; " + s)

    def text(self):
        return "\n".join(self.l) + "\n"


def vr(b, n):
    return f"v[{b}:{b+n-1}]"


def srd(a, d, lo, nbytes):
    a(f"s_mov_b32 s{d}, s{lo}")
    a(f"s_and_b32 s{d+1}, s{lo+1}, 0xffff")
    a(f"s_mov_b32 s{d+2}, {nbytes}")
    a(f"s_mov_b32 s{d+3}, 0x00020000")


X_BYTES = 1024 * 1024 * 2
W_BYTES = 1024 * 3584 * 2
H_BYTES = 1024 * 3584 * 2
O_BYTES = 1024 * 1024 * 2


def gen_k1(opt):
    a = A()
    name = "swiglu_g1_kernel"
    NST = 16
    a.lab(name)
    a("s_cmp_ge_u32 s2, 224")
    a("s_cbranch_scc1 K1_END")
    a("s_load_dwordx4 s[4:7], s[0:1], 0")
    a("s_load_dwordx2 s[8:9], s[0:1], 16")
    a("s_load_dwordx2 s[10:11], s[0:1], 48")
    a("s_movk_i32 s45, 16384")
    a("s_and_b32 s28, s2, 7")
    a("s_lshr_b32 s29, s2, 3")
    a("s_mul_i32 s28, s28, 28")
    a("s_add_u32 s28, s28, s29")
    a("s_lshr_b32 s30, s28, 3")
    a("s_and_b32 s31, s28, 7")
    a("v_lshrrev_b32 v1, 6, v0")
    a("v_and_b32 v2, 63, v0")
    a("v_readfirstlane_b32 s32, v1")
    a("s_nop 3")
    a("s_cmp_ge_u32 s32, 4")
    a("s_cbranch_scc1 K1_LOADER")

    a.c("compute wave setup")
    a("s_and_b32 s33, s32, 1")
    a("s_lshr_b32 s34, s32, 1")
    a("v_and_b32 v3, 31, v2")
    a("v_lshrrev_b32 v4, 5, v2")
    a("v_bfe_u32 v5, v2, 1, 3")
    a("s_lshl_b32 s35, s33, 6")
    a("v_add_u32 v6, s35, v3")
    a("v_lshlrev_b32 v6, 7, v6")
    VX = [10, 11, 12, 13]
    for j in range(4):
        a(f"v_add_u32 v7, {2*j}, v4")
        a("v_xor_b32 v7, v7, v5")
        a(f"v_lshl_add_u32 v{VX[j]}, v7, 4, v6")
    a("v_bfe_u32 v5, v2, 2, 2")
    a("v_lshl_add_u32 v6, v4, 3, v5")
    a("v_lshlrev_b32 v6, 8, v6")
    a("v_bfe_u32 v7, v2, 4, 1")
    a("v_lshl_add_u32 v6, v7, 5, v6")
    a("v_and_b32 v7, 3, v2")
    a("v_lshl_add_u32 v6, v7, 3, v6")
    a("v_add_u32 v6, 49152, v6")
    VW = [14, 15]
    a("s_lshl_b32 s35, s34, 1")
    for b in range(2):
        a(f"s_add_u32 s36, s35, {b}")
        a("v_xor_b32 v7, s36, v5")
        a(f"v_lshl_add_u32 v{VW[b]}, v7, 6, v6")
    ACC = 128

    def acc(mat, b, am):
        return ACC + ((mat * 2 + b) * 2 + am) * 16

    for i in range(128):
        a(f"v_mov_b32 v{ACC+i}, 0")
    FR = [64, 88]

    def fx(st, am):
        return FR[st] + am * 4

    def fw(st, mat, b):
        return FR[st] + 8 + (mat * 2 + b) * 4

    def reads(st, j):
        r = []

        def rx(am):
            return f"ds_read_b128 {vr(fx(st, am), 4)}, v{VX[j]} offset:{am*4096}"

        def rw(mat, b, t):
            return f"ds_read_b64_tr_b16 {vr(fw(st, mat, b)+2*t, 2)}, v{VW[b]} offset:{mat*49152 + (16*j+4*t)*256}"
        r += [rx(0), rw(0, 0, 0), rw(0, 0, 1), rx(1), rw(1, 0, 0), rw(1, 0, 1),
              rw(0, 1, 0), rw(0, 1, 1), rw(1, 1, 0), rw(1, 1, 1)]
        return r

    def mfmas(st):
        r = []
        for b in range(2):
            for mat in range(2):
                for am in range(2):
                    c = acc(mat, b, am)
                    r.append(f"v_mfma_f32_32x32x16_bf16 {vr(c,16)}, {vr(fw(st,mat,b),4)}, {vr(fx(st,am),4)}, {vr(c,16)}")
        return r

    def step(st, fillers, first_after=0):
        m = mfmas(st)
        for i in range(8):
            a(m[i])
            for f in fillers[i]:
                a(f)

    def spread(lst, start=0, per=2):
        g = [[] for _ in range(8)]
        i = start
        for k, x in enumerate(lst):
            g[min(7, start + k // per)].append(x)
        return g

    a("s_mov_b32 s37, 0")
    a("s_mov_b32 s38, 0")
    a("s_barrier")
    for r in reads(0, 0):
        a(r)
    a.lab("K1_LOOP")
    a("s_waitcnt lgkmcnt(0)")
    step(0, spread(reads(1, 1)))
    a("s_waitcnt lgkmcnt(0)")
    step(1, spread(reads(0, 2)))
    a("s_waitcnt lgkmcnt(0)")
    g = spread(reads(1, 3))
    g[5] += ["s_add_u32 s38, s38, 1", "s_cmp_eq_u32 s38, 3", "s_cselect_b32 s39, -32768, s45", "s_cselect_b32 s38, 0, s38"]
    upd = [f"v_add_u32 v{r}, s39, v{r}" for r in VX + VW]
    g[6] += upd[:3]
    g[7] += upd[3:]
    step(0, g)
    a("s_add_u32 s37, s37, 1")
    a(f"s_cmp_eq_u32 s37, {NST}")
    a("s_waitcnt lgkmcnt(0)")
    a("s_cbranch_scc1 K1_LAST")
    g = spread(reads(0, 0), start=1)
    g[0] = ["s_barrier"]
    step(1, g)
    a("s_branch K1_LOOP")
    a.lab("K1_LAST")
    step(1, [[] for _ in range(8)])
    a.c("epilogue")
    a("s_waitcnt lgkmcnt(0)")
    srd(a, 24, 10, H_BYTES)
    a("s_lshl_b32 s40, s31, 2")
    a("s_lshl_b32 s41, s33, 1")
    a("s_add_u32 s40, s40, s41")
    a("s_mul_i32 s40, s40, 224")
    a("s_lshl_b32 s41, s30, 3")
    a("s_add_u32 s40, s40, s41")
    a("s_lshl_b32 s41, s34, 2")
    a("s_add_u32 s40, s40, s41")
    a("s_lshl_b32 s40, s40, 10")
    a(f"s_add_u32 s41, s40, {224*1024}")
    a("v_lshlrev_b32 v3, 4, v2")
    a("s_mov_b32 s42, 0xbfb8aa3b")
    a("s_mov_b32 s43, 0xbfb8aa3b")
    a("s_nop 7")
    T = 16
    for b in range(2):
        for am in range(2):
            G = acc(0, b, am)
            U = acc(1, b, am)
            for p in range(8):
                a(f"v_pk_mul_f32 {vr(T+2*p,2)}, {vr(G+2*p,2)}, s[42:43]")
            for p in range(16):
                a(f"v_exp_f32 v{T+p}, v{T+p}")
            for p in range(8):
                a(f"v_pk_mul_f32 {vr(G+2*p,2)}, {vr(G+2*p,2)}, {vr(U+2*p,2)}")
            for p in range(8):
                a(f"v_pk_add_f32 {vr(T+2*p,2)}, {vr(T+2*p,2)}, 1.0 op_sel_hi:[1,0]")
            for p in range(16):
                a(f"v_rcp_f32 v{T+p}, v{T+p}")
            a("s_nop 0")
            for p in range(8):
                a(f"v_pk_mul_f32 {vr(G+2*p,2)}, {vr(G+2*p,2)}, {vr(T+2*p,2)}")
            for p in range(8):
                a(f"v_cvt_pk_bf16_f32 v{U+p}, v{G+2*p}, v{G+2*p+1}")
            so = 40 + am
            for t in range(2):
                a(f"buffer_store_dwordx4 {vr(U+4*t,4)}, v3, s[24:27], s{so} offen offset:{(b*2+t)*1024}{opt.get('hst','')}")
    a("s_endpgm")

    a.lab("K1_LOADER")
    a("s_sub_u32 s33, s32, 4")
    a("v_lshrrev_b32 v3, 3, v2")
    a("s_lshl_b32 s34, s33, 3")
    a("v_add_u32 v3, s34, v3")
    a("v_lshlrev_b32 v3, 11, v3")
    a("v_lshrrev_b32 v4, 4, v2")
    a("s_and_b32 s34, s33, 1")
    a("s_lshl_b32 s34, s34, 2")
    a("v_add_u32 v5, s34, v4")
    a("v_and_b32 v6, 7, v2")
    a("v_xor_b32 v5, v5, v6")
    a("v_lshl_add_u32 v10, v5, 4, v3")
    for q in range(1, 4):
        a(f"v_add_u32 v{10+q}, {q*65536}, v10")
    a("s_lshl_b32 s34, s33, 2")
    a("v_add_u32 v3, s34, v4")
    a("s_movk_i32 s34, 7168")
    a("v_mul_lo_u32 v3, v3, s34")
    a("v_and_b32 v5, 15, v2")
    a("v_lshlrev_b32 v6, 2, v4")
    a("v_xor_b32 v5, v5, v6")
    a("v_lshl_add_u32 v14, v5, 4, v3")
    for q in range(1, 4):
        a(f"v_add_u32 v{14+q}, {q*16*7168}, v14")
    a("s_lshl_b32 s35, s31, 18")
    a("s_lshl_b32 s36, s30, 8")
    a("s_lshl_b32 s37, s33, 10")
    a("s_mov_b32 s38, 0")
    a("s_waitcnt lgkmcnt(0)")
    srd(a, 12, 4, X_BYTES)
    srd(a, 16, 6, W_BYTES)
    srd(a, 20, 8, W_BYTES)

    def issue():
        for q in range(4):
            a(f"s_add_u32 m0, s37, {q*4096}")
            a("s_nop 0")
            a(f"buffer_load_dwordx4 v{10+q}, s[12:15], s35 offen lds")
            a(f"s_add_u32 m0, s37, {49152+q*4096}")
            a("s_nop 0")
            a(f"buffer_load_dwordx4 v{14+q}, s[16:19], s36 offen{opt.get('wld','')} lds")
            a(f"s_add_u32 m0, s37, {98304+q*4096}")
            a("s_nop 0")
            a(f"buffer_load_dwordx4 v{14+q}, s[20:23], s36 offen{opt.get('wld','')} lds")
        a("s_add_u32 s35, s35, 128")
        a(f"s_add_u32 s36, s36, {64*7168}")
        a("s_add_u32 s38, s38, 1")
        a("s_cmp_eq_u32 s38, 3")
        a("s_cselect_b32 s39, -32768, s45")
        a("s_cselect_b32 s38, 0, s38")
        a("s_add_u32 s37, s37, s39")

    a("s_mov_b32 s40, 0")
    a.lab("K1_LPRO")
    issue()
    a("s_add_u32 s40, s40, 1")
    a("s_cmp_lt_u32 s40, 3")
    a("s_cbranch_scc1 K1_LPRO")
    a("s_waitcnt vmcnt(24)")
    a("s_barrier")
    a("s_mov_b32 s40, 1")
    a.lab("K1_LLOOP")
    a("s_waitcnt vmcnt(12)")
    a("s_barrier")
    issue()
    a("s_add_u32 s40, s40, 1")
    a(f"s_cmp_lt_u32 s40, {NST-2}")
    a("s_cbranch_scc1 K1_LLOOP")
    a("s_waitcnt vmcnt(12)")
    a("s_barrier")
    a("s_waitcnt vmcnt(0)")
    a("s_barrier")
    a.lab("K1_END")
    a("s_endpgm")
    return name, a.text(), 256, 147456, 224


def gen_k2(opt):
    a = A()
    name = "swiglu_g2_kernel"
    NST = 28
    D = opt.get("k2_slots", 4)
    SLOT = 16384
    WB = D * SLOT
    a.lab(name)
    a("s_cmp_ge_u32 s2, 256")
    a("s_cbranch_scc1 K2_END")
    a("s_load_dwordx4 s[4:7], s[0:1], 24")
    a("s_load_dwordx2 s[10:11], s[0:1], 48")
    a("s_movk_i32 s45, 16384")
    a("s_and_b32 s28, s2, 7")
    a("s_lshr_b32 s29, s2, 3")
    a("s_lshr_b32 s30, s28, 1")
    a("s_lshl_b32 s30, s30, 2")
    a("s_lshr_b32 s31, s29, 3")
    a("s_add_u32 s30, s30, s31")
    a("s_and_b32 s31, s28, 1")
    a("s_lshl_b32 s31, s31, 3")
    a("s_and_b32 s29, s29, 7")
    a("s_add_u32 s31, s31, s29")
    a("v_lshrrev_b32 v1, 6, v0")
    a("v_and_b32 v2, 63, v0")
    a("v_readfirstlane_b32 s32, v1")
    a("s_nop 3")
    a("s_cmp_ge_u32 s32, 4")
    a("s_cbranch_scc1 K2_LOADER")
    a("s_and_b32 s33, s32, 1")
    a("s_lshr_b32 s34, s32, 1")
    a("v_lshrrev_b32 v4, 5, v2")
    a("s_lshl_b32 s35, s33, 13")
    a("v_lshlrev_b32 v10, 4, v2")
    a("v_add_u32 v10, s35, v10")
    a("v_bfe_u32 v5, v2, 2, 2")
    a("v_lshl_add_u32 v6, v4, 2, v5")
    a("v_lshlrev_b32 v6, 7, v6")
    a("v_lshrrev_b32 v7, 1, v5")
    a("v_xor_b32 v7, s34, v7")
    a("v_lshl_add_u32 v6, v7, 6, v6")
    a("v_bfe_u32 v7, v2, 4, 1")
    a("v_lshl_add_u32 v6, v7, 5, v6")
    a("v_and_b32 v7, 3, v2")
    a("v_lshl_add_u32 v6, v7, 3, v6")
    a(f"v_add_u32 v11, {WB}, v6")
    ACC = 96
    for i in range(16):
        a(f"v_mov_b32 v{ACC+i}, 0")
    FR = [32, 64]

    def reads(st, half):
        r = []
        for jj in range(4):
            j = half * 4 + jj
            base = FR[st] + jj * 8
            r.append(f"ds_read_b128 {vr(base,4)}, v10 offset:{j*1024}")
            for t in range(2):
                r.append(f"ds_read_b64_tr_b16 {vr(base+4+2*t,2)}, v11 offset:{(16*j+8*t)*128}")
        return r

    def step(st, fill):
        for jj in range(4):
            base = FR[st] + jj * 8
            a(f"v_mfma_f32_32x32x16_bf16 {vr(ACC,16)}, {vr(base+4,4)}, {vr(base,4)}, {vr(ACC,16)}")
            for f in fill[jj]:
                a(f)

    def spread(lst, start=0):
        g = [[] for _ in range(4)]
        per = 4
        for k, x in enumerate(lst):
            g[min(3, start + k // per)].append(x)
        return g

    a("s_mov_b32 s37, 0")
    a("s_mov_b32 s38, 0")
    a("s_barrier")
    for r in reads(0, 0):
        a(r)
    a.lab("K2_LOOP")
    a("s_waitcnt lgkmcnt(0)")
    g = spread(reads(1, 1))
    g[3] += ["s_add_u32 s38, s38, 1", f"s_cmp_eq_u32 s38, {D}", f"s_cselect_b32 s39, {-(D-1)*SLOT}, s45",
             "s_cselect_b32 s38, 0, s38", "v_add_u32 v10, s39, v10", "v_add_u32 v11, s39, v11"]
    step(0, g)
    a("s_add_u32 s37, s37, 1")
    a(f"s_cmp_eq_u32 s37, {NST}")
    a("s_waitcnt lgkmcnt(0)")
    a("s_cbranch_scc1 K2_LAST")
    g = spread(reads(0, 0), start=1)
    g[0] = ["s_barrier"] + g[0]
    step(1, g)
    a("s_branch K2_LOOP")
    a.lab("K2_LAST")
    step(1, [[] for _ in range(4)])
    srd(a, 24, 6, O_BYTES)
    a("v_and_b32 v3, 31, v2")
    a("s_lshl_b32 s35, s30, 6")
    a("s_lshl_b32 s36, s33, 5")
    a("s_add_u32 s35, s35, s36")
    a("v_add_u32 v3, s35, v3")
    a("v_lshlrev_b32 v3, 11, v3")
    a("v_lshl_add_u32 v3, v4, 4, v3")
    a("s_lshl_b32 s35, s31, 7")
    a("s_lshl_b32 s36, s34, 6")
    a("s_add_u32 s35, s35, s36")
    a("s_nop 7")
    a("s_nop 3")
    for i in range(8):
        a(f"v_cvt_pk_bf16_f32 v{16+i}, v{ACC+2*i}, v{ACC+2*i+1}")
    a("s_nop 1")
    a("v_permlane32_swap_b32 v16, v18")
    a("v_permlane32_swap_b32 v17, v19")
    a("v_permlane32_swap_b32 v20, v22")
    a("v_permlane32_swap_b32 v21, v23")
    a("s_nop 1")
    a("buffer_store_dwordx4 v[16:19], v3, s[24:27], s35 offen")
    a("buffer_store_dwordx4 v[20:23], v3, s[24:27], s35 offen offset:32")
    a("s_endpgm")
    a.lab("K2_LOADER")
    a("s_sub_u32 s33, s32, 4")
    a("s_lshr_b32 s34, s33, 1")
    a(f"s_mul_i32 s34, s34, {224*1024}")
    a("s_and_b32 s35, s33, 1")
    a("s_lshl_b32 s35, s35, 12")
    a("s_add_u32 s34, s34, s35")
    a("v_lshlrev_b32 v10, 4, v2")
    a("v_add_u32 v10, s34, v10")
    a("v_lshrrev_b32 v3, 3, v2")
    a("s_lshl_b32 s34, s33, 5")
    a("v_add_u32 v3, s34, v3")
    a("v_lshlrev_b32 v3, 11, v3")
    a("v_bfe_u32 v4, v2, 4, 1")
    a("v_lshlrev_b32 v4, 2, v4")
    a("v_and_b32 v5, 7, v2")
    a("v_xor_b32 v5, v5, v4")
    a("v_lshl_add_u32 v14, v5, 4, v3")
    for q in range(1, 4):
        a(f"v_add_u32 v{14+q}, {q*8*2048}, v14")
    a(f"s_mul_i32 s35, s30, {2*224*1024}")
    a("s_lshl_b32 s36, s31, 7")
    a("s_lshl_b32 s37, s33, 12")
    a("s_mov_b32 s38, 0")
    a("s_waitcnt lgkmcnt(0)")
    srd(a, 12, 10, H_BYTES)
    srd(a, 16, 4, W_BYTES)

    def issue():
        a("s_mov_b32 m0, s37")
        a("s_nop 0")
        for q in range(4):
            a(f"buffer_load_dwordx4 v10, s[12:15], s35 offen offset:{q*1024}{opt.get('hld','')} lds")
        for q in range(4):
            a(f"s_add_u32 m0, s37, {WB+q*1024}")
            a("s_nop 0")
            a(f"buffer_load_dwordx4 v{14+q}, s[16:19], s36 offen{opt.get('wld2','')} lds")
        a("s_add_u32 s35, s35, 8192")
        a(f"s_add_u32 s36, s36, {128*2048}")
        a("s_add_u32 s38, s38, 1")
        a(f"s_cmp_eq_u32 s38, {D}")
        a(f"s_cselect_b32 s39, {-(D-1)*SLOT}, s45")
        a("s_cselect_b32 s38, 0, s38")
        a("s_add_u32 s37, s37, s39")

    a("s_mov_b32 s40, 0")
    a.lab("K2_LPRO")
    issue()
    a("s_add_u32 s40, s40, 1")
    a(f"s_cmp_lt_u32 s40, {D}")
    a("s_cbranch_scc1 K2_LPRO")
    a(f"s_waitcnt vmcnt({8*(D-1)})")
    a("s_barrier")
    a("s_mov_b32 s40, 1")
    a.lab("K2_LLOOP")
    a(f"s_waitcnt vmcnt({8*(D-2)})")
    a("s_barrier")
    issue()
    a("s_add_u32 s40, s40, 1")
    a(f"s_cmp_lt_u32 s40, {NST-D+1}")
    a("s_cbranch_scc1 K2_LLOOP")
    for r in range(D - 2, -1, -1):
        a(f"s_waitcnt vmcnt({8*r})")
        a("s_barrier")
    a.lab("K2_END")
    a("s_endpgm")
    return name, a.text(), 112, 2 * D * SLOT, 256


def build(opt):
    ks = [gen_k1(opt), gen_k2(opt)]
    out = HDR
    for name, _, _, lds, grid in ks:
        out += f"; @launch kernel={name} grid=({grid},1,1) block=(512,1,1) lds={lds}\n"
    out += '.amdgcn_target "amdgcn-amd-amdhsa--gfx950"\n.text\n'
    for name, body, _, _, _ in ks:
        out += f".globl {name}\n.p2align 8\n.type {name},@function\n" + body
    out += '.section .rodata,"a"\n'
    for name, _, nv, _, _ in ks:
        out += f""".p2align 6
.amdhsa_kernel {name}
  .amdhsa_next_free_vgpr {nv}
  .amdhsa_next_free_sgpr 64
  .amdhsa_accum_offset {nv}
  .amdhsa_group_segment_fixed_size 0
  .amdhsa_kernarg_size 56
  .amdhsa_user_sgpr_count 2
  .amdhsa_user_sgpr_kernarg_segment_ptr 1
  .amdhsa_system_sgpr_workgroup_id_x 1
.end_amdhsa_kernel
"""
    return out


if __name__ == "__main__":
    opt = {}
    outp = sys.argv[1]
    for kv in sys.argv[2:]:
        k, v = kv.split("=", 1)
        try:
            v = int(v)
        except ValueError:
            v = " " + v.replace("+", " ") if v else ""
        opt[k] = v
    open(outp, "w").write(build(opt))
```

```python
import sys

HDR = """; Kernarg layout for this problem (56 bytes, ptrs only, base s[0:1]):
"""

OPT = {}
X_BYTES = 1024 * 1024 * 2
W_BYTES = 1024 * 3584 * 2
O_BYTES = 1024 * 1024 * 2
WS_BYTES = 268435456
FLAG_OFF = 8 << 20
STAMP_OFF = 64 << 20

sX, sG, sU, sD, sH, sO, sB = 20, 24, 28, 32, 36, 40, 44
sW, sMT, sNT, sFT, sMT1 = 48, 49, 50, 51, 52
sT0, sT1, sT2, sT3, sT4, sT5 = 53, 54, 55, 56, 57, 58
sWD0, sLB, sTAG, sCNT = 59, 60, 61, 62
sHM = 96
sST = 64

vLANE, vT0, vT1, vT2 = 2, 3, 4, 5
vWSRC, vL16, vWR, vTAG = 6, 7, 8, 9
vTR = 10
vFL, vZ = 14, 15
ACC2 = 16
UNIT = 80
NUNIT = 11
NREG = 9
WRING, XRING = 0, 98304


class A:
    def __init__(self):
        self.l = []
        self.q = []

    def __call__(self, s):
        if OPT.get("nomfma") and s.startswith("v_mfma"):
            return
        self.l.append("    " + s)

    def lab(self, s):
        self.l.append(s + ":")

    def c(self, s):
        self.l.append("    ; " + s)

    def text(self):
        return "\n".join(self.l) + "\n"

    def vm(self, s, tag):
        self(s)
        self.q.append(tag)

    def vreset(self):
        self.q = []

    def vwait(self, pred):
        last = -1
        for i, t in enumerate(self.q):
            if pred(t):
                last = i
        if last < 0:
            return
        n = len(self.q) - 1 - last
        assert n <= 63, n
        self(f"s_waitcnt vmcnt({n})")
        self.q = self.q[last + 1:]


def vr(b, n):
    return f"v[{b}:{b+n-1}]"


def sr(b, n=4):
    return f"s[{b}:{b+n-1}]"


def srd(a, d, lo, nbytes):
    a(f"s_mov_b32 s{d}, s{lo}")
    a(f"s_and_b32 s{d+1}, s{lo+1}, 0xffff")
    a(f"s_mov_b32 s{d+2}, {nbytes}")
    a(f"s_mov_b32 s{d+3}, 0x00020000")


def stamp(a, i):
    if OPT.get("stamp"):
        a(f"s_memrealtime s[{sST+2*i}:{sST+2*i+1}]")


def cstamp(a, i):
    if OPT.get("stamp"):
        a(f"s_memtime s[{sST+2*i}:{sST+2*i+1}]")


def unit(u):
    return UNIT + 16 * u


def acc2(nb, mb):
    return ACC2 + (nb * 4 + mb) * 4


def p2_setup(a):
    a.c("phase-2 constants")
    a(f"s_mul_i32 s{sWD0}, s{sW}, {14*65536}")
    a(f"s_lshl_b32 s{sT0}, s{sNT}, 7")
    a(f"s_add_u32 s{sWD0}, s{sWD0}, s{sT0}")
    a(f"s_mul_i32 s{sLB}, s{sW}, 20480")
    a(f"v_lshrrev_b32 v{vT0}, 4, v{vLANE}")
    a(f"v_lshlrev_b32 v{vT1}, 1, v{vT0}")
    a(f"v_and_b32 v{vT2}, 7, v{vLANE}")
    a(f"v_xor_b32 v{vT1}, v{vT1}, v{vT2}")
    a(f"v_lshrrev_b32 v{vT2}, 3, v{vLANE}")
    a(f"v_lshlrev_b32 v{vT2}, 11, v{vT2}")
    a(f"v_lshl_add_u32 v{vWSRC}, v{vT1}, 4, v{vT2}")
    a(f"v_lshlrev_b32 v{vL16}, 4, v{vLANE}")
    a(f"v_add_u32 v{vWR}, s{sLB}, v{vL16}")
    a(f"v_lshrrev_b32 v{vT1}, 2, v{vLANE}")
    a(f"v_bfe_u32 v{vT2}, v{vLANE}, 3, 2")
    a(f"v_lshlrev_b32 v{vT1}, 7, v{vT1}")
    a(f"v_and_b32 v{vT0}, 3, v{vLANE}")
    a(f"v_lshl_add_u32 v{vT1}, v{vT0}, 3, v{vT1}")
    a(f"v_add_u32 v{vT1}, s{sLB}, v{vT1}")
    for nb in range(4):
        a(f"v_xor_b32 v{vT0}, {nb}, v{vT2}")
        a(f"v_lshl_add_u32 v{vTR+nb}, v{vT0}, 5, v{vT1}")
    a(f"s_mul_i32 s{sT0}, s{sMT}, {4*112*1024}")
    a(f"s_mul_i32 s{sT1}, s{sW}, {14*1024}")
    a(f"s_add_u32 s{sHM}, s{sT0}, s{sT1}")
    for mb in range(1, 4):
        a(f"s_add_u32 s{sHM+mb}, s{sHM}, {mb*112*1024}")
    a(f"s_lshl_b32 s{sT0}, s{sMT}, 8")
    a(f"s_mul_i32 s{sT1}, s{sW}, 28")
    a(f"s_add_u32 s{sT0}, s{sT0}, s{sT1}")
    a(f"s_add_u32 s{sT0}, s{sT0}, {FLAG_OFF}")
    a(f"v_lshlrev_b32 v{vFL}, 2, v{vLANE}")
    a(f"v_add_u32 v{vFL}, s{sT0}, v{vFL}")
    a(f"v_mov_b32 v{vZ}, 0")


def dma_slice(a, j, blk, tag, sbase=sWD0, lbase=sLB):
    for q in range(4):
        a(f"s_add_u32 m0, s{lbase}, {blk*4096 + q*1024}")
        a(f"s_add_u32 s{sT0}, s{sbase}, {j*65536 + q*16384}")
        a.vm(f"buffer_load_dwordx4 v{vWSRC}, {sr(sD)}, s{sT0} offen lds", tag)


def raw_slice(a, j, u, tag):
    for q in range(4):
        a(f"s_add_u32 s{sT0}, s{sWD0}, {j*65536 + q*16384}")
        a.vm(f"buffer_load_dwordx4 {vr(unit(u)+4*q, 4)}, v{vWSRC}, {sr(sD)}, s{sT0} offen", tag)


def tr_slice(blk, u):
    r = []
    for nb in range(4):
        for t in range(2):
            r.append(f"ds_read_b64_tr_b16 {vr(unit(u)+4*nb+2*t, 2)}, v{vTR+nb} offset:{blk*4096 + t*2048}")
    return r


def tag_load(a):
    a.vm(f"buffer_load_dword v{vTAG}, v{vZ}, {sr(sB)}, 0 offen sc1", "tag")


def tag_check(a, lab):
    a(f"v_readfirstlane_b32 s{sTAG}, v{vTAG}")
    a(f"s_mov_b32 s{sCNT}, 0x40000")
    a.lab(f"{lab}_TL")
    a(f"s_cmp_lg_u32 s{sTAG}, 0")
    a(f"s_cbranch_scc1 {lab}_TOK")
    a(f"s_sub_u32 s{sCNT}, s{sCNT}, 1")
    a(f"s_cbranch_scc1 {lab}_TOK")
    a(f"buffer_load_dword v{vTAG}, v{vZ}, {sr(sB)}, 0 offen sc1")
    a("s_waitcnt vmcnt(0)")
    a(f"v_readfirstlane_b32 s{sTAG}, v{vTAG}")
    a(f"s_branch {lab}_TL")
    a.lab(f"{lab}_TOK")


def zero_acc2(a):
    for i in range(64):
        a(f"v_mov_b32 v{ACC2+i}, 0")


def gen(opt):
    a = A()
    name = "standalone__swiglu_ffn__sampling_kernel"
    a.lab(name)
    a("s_cmp_ge_u32 s2, 256")
    a("s_cbranch_scc1 L_END")
    stamp(a, 0)
    a("s_load_dwordx8 s[4:11], s[0:1], 0")
    a("s_load_dwordx4 s[12:15], s[0:1], 32")
    a("s_load_dwordx2 s[16:17], s[0:1], 48")
    a("v_lshrrev_b32 v1, 6, v0")
    a(f"v_and_b32 v{vLANE}, 63, v0")
    a(f"v_readfirstlane_b32 s{sW}, v1")
    a(f"s_and_b32 s{sT0}, s2, 7")
    a(f"s_lshr_b32 s{sT1}, s2, 3")
    a(f"s_lshr_b32 s{sMT}, s{sT0}, 1")
    a(f"s_lshl_b32 s{sMT}, s{sMT}, 2")
    a(f"s_lshr_b32 s{sT2}, s{sT1}, 3")
    a(f"s_add_u32 s{sMT}, s{sMT}, s{sT2}")
    a(f"s_and_b32 s{sNT}, s{sT0}, 1")
    a(f"s_lshl_b32 s{sNT}, s{sNT}, 3")
    a(f"s_and_b32 s{sT2}, s{sT1}, 7")
    a(f"s_add_u32 s{sNT}, s{sNT}, s{sT2}")
    a(f"s_mul_i32 s{sT2}, s{sT0}, 28")
    a(f"s_add_u32 s{sT2}, s{sT2}, s{sT1}")
    a(f"s_sub_u32 s{sT2}, s{sT2}, 4")
    a(f"s_lshr_b32 s{sFT}, s{sT2}, 3")
    a(f"s_and_b32 s{sMT1}, s{sT2}, 7")
    a(f"s_cmp_lt_u32 s{sT1}, 4")
    a("s_cbranch_scc1 L_SPARE")
    a(f"s_cmp_lt_u32 s{sW}, 4")
    a("s_cbranch_scc1 L_COMPUTE")

    a.c("loader")
    sLW, sLM, sXO, sWO = sT2, sT3, sT4, sT5
    vXS, vWS = 16, 18
    a(f"s_sub_u32 s{sLW}, s{sW}, 4")
    a(f"v_lshrrev_b32 v{vT0}, 3, v{vLANE}")
    a(f"s_lshl_b32 s{sT0}, s{sLW}, 3")
    a(f"v_add_u32 v{vT0}, s{sT0}, v{vT0}")
    a(f"v_lshlrev_b32 v{vT0}, 11, v{vT0}")
    a(f"v_lshrrev_b32 v{vT1}, 4, v{vLANE}")
    a(f"s_and_b32 s{sT0}, s{sLW}, 1")
    a(f"s_lshl_b32 s{sT0}, s{sT0}, 2")
    a(f"v_add_u32 v{vT2}, s{sT0}, v{vT1}")
    a(f"v_and_b32 v{vXS}, 7, v{vLANE}")
    a(f"v_xor_b32 v{vT2}, v{vT2}, v{vXS}")
    a(f"v_lshl_add_u32 v{vXS}, v{vT2}, 4, v{vT0}")
    a(f"v_add_u32 v{vXS+1}, {32*2048}, v{vXS}")
    a(f"s_lshl_b32 s{sT0}, s{sLW}, 2")
    a(f"v_add_u32 v{vT0}, s{sT0}, v{vT1}")
    a(f"s_movk_i32 s{sT0}, 7168")
    a(f"v_mul_lo_u32 v{vT0}, v{vT0}, s{sT0}")
    a(f"s_lshr_b32 s{sT0}, s{sLW}, 1")
    a(f"s_lshl_b32 s{sT0}, s{sT0}, 2")
    a(f"v_add_u32 v{vT1}, s{sT0}, v{vT1}")
    a(f"v_lshlrev_b32 v{vT1}, 1, v{vT1}")
    a(f"v_and_b32 v{vT2}, 15, v{vLANE}")
    a(f"v_xor_b32 v{vT1}, v{vT1}, v{vT2}")
    a(f"v_lshl_add_u32 v{vWS}, v{vT1}, 4, v{vT0}")
    a(f"v_add_u32 v{vWS+1}, {16*7168}, v{vWS}")
    a(f"s_lshl_b32 s{sLM}, s{sLW}, 10")
    a(f"s_lshl_b32 s{sXO}, s{sMT1}, 18")
    a(f"s_lshl_b32 s{sWO}, s{sFT}, 8")
    a("s_waitcnt lgkmcnt(0)")
    srd(a, sX, 4, X_BYTES)
    srd(a, sG, 6, W_BYTES)
    srd(a, sU, 8, W_BYTES)
    wld = opt.get("wld", "")

    def group(i):
        xs, xh = (i + 6) // 2, (i + 6) % 2
        h = i + 5
        if xs <= 15:
            a(f"s_add_u32 s{sT0}, s{sXO}, {xh*64*2048 + xs*128}")
            for q in range(2):
                a(f"s_add_u32 m0, s{sLM}, {XRING + (xs % 4)*16384 + xh*8192 + q*4096}")
                a("s_nop 0")
                a.vm(f"buffer_load_dwordx4 v{vXS+q}, {sr(sX)}, s{sT0} offen lds", ("g", i))
        if 0 <= h <= 31:
            a(f"s_add_u32 s{sT0}, s{sWO}, {h*32*7168}")
            for q in range(2):
                for mat in range(2):
                    a(f"s_add_u32 m0, s{sLM}, {WRING + (h % 6)*16384 + mat*8192 + q*4096}")
                    a("s_nop 0")
                    a.vm(f"buffer_load_dwordx4 v{vWS+q}, {sr((sG, sU)[mat])}, s{sT0} offen{wld} lds", ("g", i))

    a.vreset()
    for i in range(-6, 0):
        group(i)
    srd(a, sD, 10, W_BYTES)
    srd(a, sH, 16, WS_BYTES)
    srd(a, sO, 12, O_BYTES)
    srd(a, sB, 14, 256)
    p2_setup(a)
    rawq = [(j, q) for j in range(NREG) for q in range(4)]
    rs = opt.get("rawstart", 99)
    rper = opt.get("rawper", 1)

    def raw(n):
        for _ in range(n):
            if rawq:
                j, q = rawq.pop(0)
                a(f"s_add_u32 s{sT0}, s{sWD0}, {j*65536 + q*16384}")
                a.vm(f"buffer_load_dwordx4 {vr(unit(j)+4*q, 4)}, v{vWSRC}, {sr(sD)}, s{sT0} offen", "raw")

    for i in range(32):
        a.vwait(lambda t: t[0] == "g" and t[1] <= i - 5)
        a("s_barrier")
        if i == 0:
            stamp(a, 1)
        group(i)
        if i >= rs:
            raw(rper)
        if i == 26:
            raw(99)
    a("s_barrier")
    stamp(a, 2)
    a.c("round 1 for the mate compute wave")
    a(f"s_sub_u32 s{sT1}, s{sWD0}, {4*14*65536}")
    a(f"s_sub_u32 s{sT2}, s{sLB}, {4*20480}")
    for j in range(5):
        dma_slice(a, j, j, "mate", sbase=sT1, lbase=sT2)
    zero_acc2(a)
    a.vwait(lambda t: t == "raw")
    a.c("raw rows -> fragments through own LDS blocks")
    for j in range(NREG):
        blk = j % 5
        for q in range(4):
            a(f"ds_write_b128 v{vWR}, {vr(unit(j)+4*q, 4)} offset:{blk*4096 + q*1024}")
        for r in tr_slice(blk, j):
            a(r)
    a("s_waitcnt lgkmcnt(0)")
    dma_slice(a, 9, 4, "park")
    for j in range(10, 14):
        dma_slice(a, j, j - 10, "park")
    tag_load(a)
    a.vwait(lambda t: t == "mate")
    a("s_barrier")
    stamp(a, 3)
    a("s_waitcnt vmcnt(0)")
    tag_check(a, "LD")
    a("s_branch L_P2")

    a.lab("L_COMPUTE")
    sWM, sWF, sIT, sSL, sDW, sXL, sDX, sC16 = 96, 97, 98, 99, sT2, sT3, sT4, sT5
    a(f"s_and_b32 s{sWM}, s{sW}, 1")
    a(f"s_lshr_b32 s{sWF}, s{sW}, 1")
    VX = [10, 11]
    VW = [12, 13, 14, 15]
    a(f"v_and_b32 v{vT0}, 15, v{vLANE}")
    a(f"v_lshrrev_b32 v{vT1}, 4, v{vLANE}")
    a(f"v_bfe_u32 v{vT2}, v{vLANE}, 1, 3")
    a(f"s_lshl_b32 s{sT0}, s{sWM}, 6")
    a(f"v_add_u32 v{vT0}, s{sT0}, v{vT0}")
    a(f"v_lshlrev_b32 v{vT0}, 7, v{vT0}")
    a(f"v_add_u32 v{vT0}, {XRING}, v{vT0}")
    a(f"v_xor_b32 v{vT2}, v{vT2}, v{vT1}")
    a(f"v_lshl_add_u32 v{VX[0]}, v{vT2}, 4, v{vT0}")
    a(f"v_xor_b32 v{vT2}, 4, v{vT2}")
    a(f"v_lshl_add_u32 v{VX[1]}, v{vT2}, 4, v{vT0}")
    a(f"v_bfe_u32 v{vT2}, v{vLANE}, 2, 2")
    a(f"v_lshl_add_u32 v{vT0}, v{vT1}, 3, v{vT2}")
    a(f"v_lshlrev_b32 v{vT0}, 8, v{vT0}")
    a(f"v_and_b32 v{vT1}, 3, v{vLANE}")
    a(f"v_lshl_add_u32 v{vT0}, v{vT1}, 3, v{vT0}")
    a(f"v_bfe_u32 v{vT2}, v{vLANE}, 2, 3")
    a(f"s_lshl_b32 s{sT0}, s{sWF}, 2")
    for fb in range(4):
        a(f"s_add_u32 s{sT1}, s{sT0}, {fb}")
        a(f"v_xor_b32 v{vT1}, s{sT1}, v{vT2}")
        a(f"v_lshl_add_u32 v{VW[fb]}, v{vT1}, 5, v{vT0}")
    ACC = 128

    def acc(mat, fb, mb):
        return ACC + ((mat * 4 + fb) * 4 + mb) * 4

    for i in range(128):
        a(f"v_mov_b32 v{ACC+i}, 0")
    FR = [32, 80]

    def fx(st, mb):
        return FR[st] + mb * 4

    def fw(st, mat, fb):
        return FR[st] + 16 + (mat * 4 + fb) * 4

    def reads(st, kk):
        def rx(mb):
            return f"ds_read_b128 {vr(fx(st, mb), 4)}, v{VX[kk]} offset:{mb*2048}"

        def rw(mat, fb, t):
            return f"ds_read_b64_tr_b16 {vr(fw(st, mat, fb)+2*t, 2)}, v{VW[fb]} offset:{mat*8192 + t*1024}"
        r = []
        for fb in range(4):
            r += [rx(fb), rw(0, fb, 0), rw(0, fb, 1), rw(1, fb, 0), rw(1, fb, 1)]
        return r

    def mfmas(st):
        r = []
        for fb in range(4):
            for mat in range(2):
                for mb in range(4):
                    c = acc(mat, fb, mb)
                    r.append(f"v_mfma_f32_16x16x32_bf16 {vr(c,4)}, {vr(fw(st,mat,fb),4)}, {vr(fx(st,mb),4)}, {vr(c,4)}")
        return r

    GB = opt.get("gb", 1)

    def wupd():
        return ([f"s_add_u32 s{sSL}, s{sSL}, 1", f"s_cmp_eq_u32 s{sSL}, 6",
                 f"s_cselect_b32 s{sDW}, {-5*16384}, s{sC16}", f"s_cselect_b32 s{sSL}, 0, s{sSL}"],
                [f"v_add_u32 v{r}, s{sDW}, v{r}" for r in VW])

    def xupd(kk):
        return [f"v_add_u32 v{VX[kk]}, s{sDX}, v{VX[kk]}"]

    def half(st, rd, extra_s=(), extra_v=(), barrier=True):
        g = [[] for _ in range(32)]
        if barrier:
            g[GB - 1].append("s_barrier")
        for k, x in enumerate(rd):
            g[GB + k].append(x)
        p = GB + len(rd)
        for k, x in enumerate(extra_s):
            g[min(31, p - 4 + k // 2)].append(x)
        for k, x in enumerate(extra_v):
            g[min(31, p + k)].append(x)
        m = mfmas(st)
        for i in range(32):
            a(m[i])
            for f in g[i]:
                a(f)

    a(f"s_mov_b32 s{sIT}, 0")
    a(f"s_mov_b32 s{sSL}, 0")
    a(f"s_mov_b32 s{sXL}, 0")
    a(f"s_movk_i32 s{sC16}, 16384")
    a("s_barrier")
    stamp(a, 1)
    cstamp(a, 10)
    for r in reads(0, 0):
        a(r)
    s_, v_ = wupd()
    for x in s_ + v_:
        a(x)
    a.lab("L_LOOP")
    a("s_waitcnt lgkmcnt(0)")
    s_, v_ = wupd()
    xs_ = [f"s_add_u32 s{sXL}, s{sXL}, 1", f"s_cmp_eq_u32 s{sXL}, 4",
           f"s_cselect_b32 s{sDX}, {-3*16384}, s{sC16}", f"s_cselect_b32 s{sXL}, 0, s{sXL}"]
    half(0, reads(1, 1), extra_s=s_ + xs_, extra_v=v_ + xupd(0) + xupd(1))
    a(f"s_add_u32 s{sIT}, s{sIT}, 1")
    a(f"s_cmp_eq_u32 s{sIT}, 16")
    a("s_waitcnt lgkmcnt(0)")
    a("s_cbranch_scc1 L_LAST")
    s_, v_ = wupd()
    half(1, reads(0, 0), extra_s=s_, extra_v=v_)
    a("s_branch L_LOOP")
    a.lab("L_LAST")
    half(1, [])
    stamp(a, 2)
    cstamp(a, 11)
    a.c("epilogue")
    srd(a, sD, 10, W_BYTES)
    srd(a, sH, 16, WS_BYTES)
    srd(a, sO, 12, O_BYTES)
    srd(a, sB, 14, 256)
    a(f"v_mov_b32 v{vZ}, 0")
    a.vreset()
    tag_load(a)
    a(f"s_lshl_b32 s{sT0}, s{sMT1}, 1")
    a(f"s_add_u32 s{sT0}, s{sT0}, s{sWM}")
    a(f"s_lshl_b32 s{sT1}, s{sFT}, 1")
    a(f"s_add_u32 s{sT1}, s{sT1}, s{sWF}")
    a(f"s_lshl_b32 s{sT5}, s{sT0}, 6")
    a(f"s_add_u32 s{sT5}, s{sT5}, s{sT1}")
    a(f"s_lshl_b32 s{sT5}, s{sT5}, 2")
    a(f"s_add_u32 s{sT5}, s{sT5}, {FLAG_OFF}")
    a(f"s_mul_i32 s{sT0}, s{sT0}, {4*112}")
    a(f"s_lshl_b32 s{sT1}, s{sT1}, 1")
    a(f"s_add_u32 s{sT0}, s{sT0}, s{sT1}")
    a(f"s_lshl_b32 s{sT1}, s{sT0}, 10")
    a(f"v_lshlrev_b32 v{vL16}, 4, v{vLANE}")
    a(f"s_mov_b32 s{sT2}, 0xbfb8aa3b")
    T = 32
    hst = opt.get("hst", " sc1")
    for mb in range(4):
        G = [acc(0, fb, mb) for fb in range(4)]
        U = [acc(1, fb, mb) for fb in range(4)]
        for fb in range(4):
            for r in range(4):
                a(f"v_mul_f32 v{T+4*fb+r}, s{sT2}, v{G[fb]+r}")
        for p in range(16):
            a(f"v_exp_f32 v{T+p}, v{T+p}")
        for fb in range(4):
            for p in range(2):
                a(f"v_pk_mul_f32 {vr(G[fb]+2*p,2)}, {vr(G[fb]+2*p,2)}, {vr(U[fb]+2*p,2)}")
        for p in range(8):
            a(f"v_pk_add_f32 {vr(T+2*p,2)}, {vr(T+2*p,2)}, 1.0 op_sel_hi:[1,0]")
        for p in range(16):
            a(f"v_rcp_f32 v{T+p}, v{T+p}")
        a("s_nop 0")
        for fb in range(4):
            for p in range(2):
                a(f"v_pk_mul_f32 {vr(G[fb]+2*p,2)}, {vr(G[fb]+2*p,2)}, {vr(T+4*fb+2*p,2)}")
        O = 48 + 8 * mb
        for fb in range(4):
            for p in range(2):
                a(f"v_cvt_pk_bf16_f32 v{O+2*fb+p}, v{G[fb]+2*p}, v{G[fb]+2*p+1}")
        for u in range(2):
            a.vm(f"buffer_store_dwordx4 {vr(O+4*u,4)}, v{vL16}, {sr(sH)}, s{sT1} offen offset:{u*1024}{hst}", "hst")
        if mb < 3:
            a(f"s_add_u32 s{sT1}, s{sT1}, {112*1024}")
    stamp(a, 3)
    a(f"s_mov_b32 s{sCNT+1}, s{sT5}")
    p2_setup(a)
    a("s_barrier")
    for j in range(5):
        for r in tr_slice(j, j):
            a(r)
    a("s_waitcnt lgkmcnt(0)")
    for j in range(5, 9):
        dma_slice(a, j, j - 5, "r2")
    dma_slice(a, 9, 4, "park")
    a.vwait(lambda t: t in ("hst", "tag"))
    tag_check(a, "CP")
    a(f"v_mov_b32 v{vT0}, s{sTAG}")
    a("s_mov_b64 exec, 1")
    a.vm(f"buffer_store_dword v{vT0}, v{vZ}, {sr(sH)}, s{sCNT+1} offen sc1", "flag")
    a("s_mov_b64 exec, -1")
    stamp(a, 4)
    zero_acc2(a)
    a.vwait(lambda t: t == "r2")
    for j in range(5, 9):
        for r in tr_slice(j - 5, j):
            a(r)
    a("s_waitcnt lgkmcnt(0)")
    for j in range(10, 14):
        dma_slice(a, j, j - 10, "park")
    a("s_branch L_P2")

    a.lab("L_SPARE")
    a("s_waitcnt lgkmcnt(0)")
    srd(a, sX, 4, X_BYTES)
    srd(a, sD, 10, W_BYTES)
    srd(a, sH, 16, WS_BYTES)
    srd(a, sO, 12, O_BYTES)
    srd(a, sB, 14, 256)
    a(f"s_lshl_b32 s{sT1}, s2, 3")
    a(f"s_add_u32 s{sT1}, s{sT1}, s{sW}")
    a(f"v_mov_b32 v{vZ}, 0")
    a(f"s_cmp_lg_u32 s{sT1}, 0")
    a("s_cbranch_scc1 L_SP1")
    a(f"s_memrealtime s[{sT4-1}:{sT4}]")
    a("s_waitcnt lgkmcnt(0)")
    a(f"s_or_b32 s{sT3}, s{sT3}, 1")
    a(f"v_mov_b32 v{vT0}, s{sT3}")
    a("s_mov_b64 exec, 1")
    a(f"buffer_store_dword v{vT0}, v{vZ}, {sr(sB)}, 0 offen sc1")
    a("s_mov_b64 exec, -1")
    a.lab("L_SP1")
    a.vreset()
    if not opt.get("notouch"):
        a(f"s_lshr_b32 s{sT2}, s{sT1}, 4")
        a(f"s_lshl_b32 s{sT2}, s{sT2}, 7")
        a(f"s_and_b32 s{sT3}, s{sT1}, 15")
        a(f"s_lshl_b32 s{sT3}, s{sT3}, 17")
        a(f"s_add_u32 s{sT2}, s{sT2}, s{sT3}")
        a(f"v_lshlrev_b32 v{vT0}, 11, v{vLANE}")
        a.vm(f"buffer_load_dword v{vTAG}, v{vT0}, {sr(sX)}, s{sT2} offen", "t")
        a(f"v_lshlrev_b32 v{vT0}, 7, v{vLANE}")
        a(f"s_lshl_b32 s{sT2}, s{sT1}, 13")
        for i in range(4):
            if i >= 1:
                a("s_waitcnt vmcnt(1)")
            a.vm(f"buffer_load_dword v{vTAG}, v{vT0}, {sr(sD)}, s{sT2} offen", "t")
            a(f"s_add_u32 s{sT2}, s{sT2}, {256*8192}")
    p2_setup(a)
    zero_acc2(a)
    stamp(a, 1)
    for j in range(5):
        dma_slice(a, j, j, "r1")
    a("s_waitcnt vmcnt(0)")
    stamp(a, 2)
    a.vreset()
    for j in range(5):
        for r in tr_slice(j, j):
            a(r)
    a("s_waitcnt lgkmcnt(0)")
    for j in range(5, 9):
        dma_slice(a, j, j - 5, "r2")
    dma_slice(a, 9, 4, "park")
    tag_load(a)
    a.vwait(lambda t: t == "r2")
    for j in range(5, 9):
        for r in tr_slice(j - 5, j):
            a(r)
    a("s_waitcnt lgkmcnt(0)")
    for j in range(10, 14):
        dma_slice(a, j, j - 10, "park")
    a.vwait(lambda t: t == "tag")
    tag_check(a, "SP")

    a.lab("L_P2")
    stamp(a, 5)
    a(f"s_mov_b32 s{sCNT}, 0x20000")
    a("s_mov_b64 exec, 0x7f")
    a.lab("L_POLL")
    a(f"buffer_load_dword v{vT0}, v{vFL}, {sr(sH)}, 0 offen sc1")
    a("s_waitcnt vmcnt(0)")
    a(f"v_cmp_ne_u32 vcc, s{sTAG}, v{vT0}")
    a("s_cbranch_vccz L_GO")
    a(f"s_sub_u32 s{sCNT}, s{sCNT}, 1")
    a("s_cbranch_scc1 L_GO")
    a(f"s_sleep {opt.get('psleep', 2)}")
    a("s_branch L_POLL")
    a.lab("L_GO")
    a("s_mov_b64 exec, -1")
    stamp(a, 6)
    a.vreset()
    wu = {j: j for j in range(NREG)}
    hu = {}
    free = list(range(NREG, NUNIT))
    nexth = 0
    nextw = NREG
    hb = 0
    hld = opt.get("hld", " sc1")

    def issue_h(j, u):
        nonlocal hb
        if j // 4 != hb:
            for mb in range(4):
                a(f"s_add_u32 s{sHM+mb}, s{sHM+mb}, {(j//4 - hb)*4096}")
            hb = j // 4
        for mb in range(4):
            a.vm(f"buffer_load_dwordx4 {vr(unit(u)+4*mb,4)}, v{vL16}, {sr(sH)}, s{sHM+mb} offen offset:{(j%4)*1024}{hld}", ("h", j))
        hu[j] = u

    def fill(cur):
        nonlocal nexth, nextw
        while free:
            if nextw < 14 and (nextw <= cur + 2 or nexth >= 14):
                u = free.pop(0)
                blk = 4 if nextw == 9 else nextw - 10
                for r in tr_slice(blk, u):
                    a(r)
                wu[nextw] = u
                nextw += 1
            elif nexth < 14:
                issue_h(nexth, free.pop(0))
                nexth += 1
            else:
                break

    fill(-1)
    for j in range(14):
        a.vwait(lambda t: t == ("h", j))
        if j >= NREG:
            a("s_waitcnt lgkmcnt(0)")
        for mb in range(4):
            for nb in range(4):
                c = acc2(nb, mb)
                a(f"v_mfma_f32_16x16x32_bf16 {vr(c,4)}, {vr(unit(wu[j])+4*nb,4)}, {vr(unit(hu[j])+4*mb,4)}, {vr(c,4)}")
        free += [hu[j], wu[j]]
        fill(j)
    stamp(a, 7)
    a.c("reduction")
    R = UNIT
    a(f"v_and_b32 v{vT0}, 15, v{vLANE}")
    a(f"v_lshrrev_b32 v{vT1}, 4, v{vLANE}")
    a(f"v_xor_b32 v{vT1}, v{vT1}, v{vT0}")
    a(f"v_lshlrev_b32 v{vT0}, 8, v{vT0}")
    a(f"v_add_u32 v{vT0}, s{sLB}, v{vT0}")
    for nb in range(4):
        a(f"v_xor_b32 v{vT2}, {4*nb}, v{vT1}")
        a(f"v_lshl_add_u32 v{vTR+nb}, v{vT2}, 4, v{vT0}")
    for mb in range(4):
        for nb in range(4):
            a(f"ds_write_b128 v{vTR+nb}, {vr(acc2(nb,mb),4)} offset:{mb*4096}")
    a(f"s_lshl_b32 s{sT0}, s{sW}, 3")
    a(f"v_lshrrev_b32 v{vT0}, 3, v{vLANE}")
    a(f"v_add_u32 v{vT0}, s{sT0}, v{vT0}")
    a(f"v_and_b32 v{vT1}, 7, v{vLANE}")
    a(f"v_lshlrev_b32 v{vT2}, 1, v{vT1}")
    a(f"v_and_b32 v{vWR}, 15, v{vT0}")
    a(f"v_xor_b32 v{vT2}, v{vT2}, v{vWR}")
    a(f"v_lshlrev_b32 v{vWR}, 8, v{vT0}")
    a(f"v_lshl_add_u32 v{vWR}, v{vT2}, 4, v{vWR}")
    a(f"v_xor_b32 v{vTAG}, 16, v{vWR}")
    a(f"v_add_u32 v{vFL}, {4*20480}, v{vWR}")
    a(f"v_add_u32 v{vZ}, {4*20480}, v{vTAG}")
    a(f"v_lshlrev_b32 v{vT0}, 11, v{vT0}")
    a(f"v_lshl_add_u32 v{vT0}, v{vT1}, 4, v{vT0}")
    a(f"s_lshl_b32 s{sT0}, s{sMT}, 17")
    a(f"s_lshl_b32 s{sT1}, s{sNT}, 7")
    a(f"s_add_u32 s{sT0}, s{sT0}, s{sT1}")
    a("s_waitcnt lgkmcnt(0)")
    a("s_barrier")
    stamp(a, 8)
    for p in range(8):
        b0, b1 = (vWR, vTAG) if p < 4 else (vFL, vZ)
        a(f"ds_read_b128 {vr(R+8*p,4)}, v{b0} offset:{(p%4)*20480}")
        a(f"ds_read_b128 {vr(R+8*p+4,4)}, v{b1} offset:{(p%4)*20480}")
    for lvl, (step, wait) in enumerate(((1, None), (2, None), (4, None))):
        for p in range(0, 8, 2 * step):
            if lvl == 0:
                a(f"s_waitcnt lgkmcnt({16 - 2*(p+2)})")
            for k in range(4):
                a(f"v_pk_add_f32 {vr(R+8*p+2*k,2)}, {vr(R+8*p+2*k,2)}, {vr(R+8*(p+step)+2*k,2)}")
    for k in range(4):
        a(f"v_cvt_pk_bf16_f32 v{R+64+k}, v{R+2*k}, v{R+2*k+1}")
    a(f"buffer_store_dwordx4 {vr(R+64,4)}, v{vT0}, {sr(sO)}, s{sT0} offen")
    if opt.get("stamp"):
        a("s_waitcnt vmcnt(0)")
        stamp(a, 9)
        a(f"s_and_b32 s{sT0}, s{sW}, 3")
        a(f"s_cmp_lg_u32 s{sT0}, 0")
        a("s_cbranch_scc1 L_END")
        a("s_waitcnt lgkmcnt(0)")
        a(f"s_lshl_b32 s{sT0}, s2, 8")
        a(f"s_lshl_b32 s{sT1}, s{sW}, 5")
        a(f"s_add_u32 s{sT0}, s{sT0}, s{sT1}")
        a(f"s_add_u32 s{sT0}, s{sT0}, {STAMP_OFF}")
        a(f"v_mov_b32 v{vT0}, 0")
        a("s_mov_b64 exec, 1")
        for i in range(12):
            a(f"v_mov_b32 v4, s{sST+2*i}")
            a(f"v_mov_b32 v5, s{sST+2*i+1}")
            a(f"buffer_store_dwordx2 v[4:5], v{vT0}, {sr(sH)}, s{sT0} offen offset:{8*i}")
            a("s_nop 1")
    a.lab("L_END")
    a("s_endpgm")
    return name, a.text()


def build(opt):
    name, body = gen(opt)
    out = HDR
    out += "; @launch grid=(256,1,1) block=(512,1,1) lds=163840\n"
    out += '.amdgcn_target "amdgcn-amd-amdhsa--gfx950"\n.text\n'
    out += f".globl {name}\n.p2align 8\n.type {name},@function\n" + body
    out += '.section .rodata,"a"\n'
    out += f""".p2align 6
.amdhsa_kernel {name}
  .amdhsa_next_free_vgpr 256
  .amdhsa_next_free_sgpr 102
  .amdhsa_accum_offset 256
  .amdhsa_group_segment_fixed_size 0
  .amdhsa_kernarg_size 56
  .amdhsa_user_sgpr_count 2
  .amdhsa_user_sgpr_kernarg_segment_ptr 1
  .amdhsa_system_sgpr_workgroup_id_x 1
.end_amdhsa_kernel
"""
    return out


if __name__ == "__main__":
    opt = {}
    outp = sys.argv[1]
    for kv in sys.argv[2:]:
        k, v = kv.split("=", 1)
        try:
            v = int(v)
        except ValueError:
            v = " " + v.replace("+", " ") if v else ""
        opt[k] = v
    OPT.update(opt)
    open(outp, "w").write(build(opt))
```
